```python
import torch

def _softmax(x, axis=-1):
    return torch.softmax(x, dim=axis)
def _gelu(x):
    return torch.nn.functional.gelu(x, approximate="tanh")
def _silu(x):
    return torch.nn.functional.silu(x)
def _sigmoid(x):
    return torch.sigmoid(x)
def _layernorm(x, axis=-1, eps=1e-5):
    m = x.mean(dim=axis, keepdim=True)
    v = x.var(dim=axis, keepdim=True, unbiased=False)
    return (x - m) / torch.sqrt(v + eps)
def _scatter_add(tgt, idx, src, axis=0):
    return tgt.clone().index_add_(axis, idx, src)
def _segment_sum(src, seg, n):
    out = torch.zeros((n,) + src.shape[1:], dtype=src.dtype)
    return out.index_add_(0, seg, src)
def _pad(x, pw):
    flat = tuple(v for pair in reversed(pw) for v in pair)
    return torch.nn.functional.pad(x, flat)

kernel_name = 'recurrent_scan__softmax_full_mha__glu_gated_bilinear__prompt'

def setup_inputs():

    _w = (lambda a: (lambda t: t.to(torch.bfloat16) if t.is_floating_point() else t)(torch.as_tensor(a)))
    def _A_setup():
        B, S, D = 1, 2048, 576
        return {
            "x": _w((lambda *s: torch.randn(*s, dtype=torch.bfloat16) * 0.05)(B, S, D)),
            "wqkv": _w((lambda *s: torch.randn(*s, dtype=torch.bfloat16) * 0.2)(D, 3 * D)),
            "wo": _w((lambda *s: torch.randn(*s, dtype=torch.bfloat16) * 0.2)(D, D)),
        }
    _A_in = _A_setup()

    def _B_setup():
        B, S, D, F = 1, 2048, 576, 4608
        return {
            "x": _w((lambda *s: torch.randn(*s, dtype=torch.bfloat16) * 0.05)(B, S, D)),
            "w_gate": _w((lambda *s: torch.randn(*s, dtype=torch.bfloat16) * 0.1)(D, F) * (D ** -0.5)),
            "w_up": _w((lambda *s: torch.randn(*s, dtype=torch.bfloat16) * 0.1)(D, F) * (D ** -0.5)),
            "w_down": _w((lambda *s: torch.randn(*s, dtype=torch.bfloat16) * 0.1)(F, D) * (F ** -0.5)),
        }
    _B_in = _B_setup()

    return {
        "A_x": _A_in["x"],
        "A_wqkv": _A_in["wqkv"],
        "A_wo": _A_in["wo"],
        "B_x": _B_in["x"],
        "B_w_gate": _B_in["w_gate"],
        "B_w_up": _B_in["w_up"],
        "B_w_down": _B_in["w_down"],
    }

def reference(A_x, A_wqkv, A_wo, B_x, B_w_gate, B_w_up, B_w_down):
    def _A_ref(x, wqkv, wo):
        B, S, D = x.shape
        H = 32; Dh = D // H
        qkv = (lambda x, *d: x.permute(*d))((x @ wqkv).reshape(B, S, 3, H, Dh), 2, 0, 3, 1, 4)
        q, k, v = qkv[0], qkv[1], qkv[2]
        scale = Dh ** -0.5
        scores = torch.einsum("bhqd,bhkd->bhqk", q, k) * scale
        p = _softmax(scores, axis=-1)
        o = torch.einsum("bhqk,bhkd->bhqd", p, v)
        return (lambda x, *d: x.permute(*d))(o, 0, 2, 1, 3).reshape(B, S, D) @ wo

    def _B_ref(x, w_gate, w_up, w_down):
        g = torch.einsum("bsd,df->bsf", x, w_gate)
        u = torch.einsum("bsd,df->bsf", x, w_up)
        h = g * u
        return torch.einsum("bsf,fd->bsd", h, w_down)

    x = A_x
    xn = _layernorm(x, axis=-1)
    s = _A_ref(xn, A_wqkv, A_wo)
    g = _silu(_B_ref(xn, B_w_gate, B_w_up, B_w_down))
    return x + s * g
```

```python
class A:
    def __init__(self):
        self.l = []
        self.uid = 0
    def __call__(self, s):
        for ln in s.split('\n'):
            self.l.append('    ' + ln.strip() if ln.strip() and not ln.strip().endswith(':') else ln.strip())
    def label(self, s): self.l.append(s + ':')
    def c(self, s): self.l.append('    ; ' + s)
    def raw(self, s): self.l.append(s)
    def newlabel(self, p='L'):
        self.uid += 1
        return f'{p}_{self.uid}'
    def text(self): return '\n'.join(self.l) + '\n'
def vr(b, n=1): return f'v{b}' if n == 1 else f'v[{b}:{b+n-1}]'
def ar(b, n=1): return f'a{b}' if n == 1 else f'a[{b}:{b+n-1}]'
def sr(b, n=1): return f's{b}' if n == 1 else f's[{b}:{b+n-1}]'
def kernel_desc(name, vgpr, sgpr=96, accum=None, kernarg=80):
    if accum is None: accum = min(256, (vgpr + 3)//4*4)
    return f""".p2align 6
.amdhsa_kernel {name}
  .amdhsa_next_free_vgpr {vgpr}
  .amdhsa_next_free_sgpr {sgpr}
  .amdhsa_accum_offset {accum}
  .amdhsa_group_segment_fixed_size 0
  .amdhsa_kernarg_size {kernarg}
  .amdhsa_user_sgpr_count 2
  .amdhsa_user_sgpr_kernarg_segment_ptr 1
  .amdhsa_system_sgpr_workgroup_id_x 1
.end_amdhsa_kernel
"""
def kernel_head(name):
    return f""".globl {name}
.p2align 8
.type {name},@function
{name}:
"""
```

```python
from common import *
QM=0
QT=16
Sb=24
Pb=56
KA=72
KT=80
VA0=84
VA1=92
Ob=100
VKA=164; VKT=165; VVA=166; VL=167
TM=168
MX=236
VOM=240; VOT=241
QRAW=244
SWS=12
SH=44; SQG=45; SW=37; STMP=42; SC0=40; SC1=41
SGK=46; SGT=47; SGV=48; SGVL=49; SW1K=50; SWL=51
SNKB=52; SBIAS=53; SBAR=54; SCNT=55; SFLAG=56; SONE=57
L_KM=0; L_KT=65536; L_VT=81920
BIAS=70.0
def S(t): return Sb+16*(t%2)
def P(t): return Pb+8*(t%2)
def O(j): return Ob+16*j
def emit_att(a, opt={}):
    ST=opt.get('st', lambda a,i: None)
    a(f"s_load_dwordx2 s[{SWS}:{SWS+1}], s[0:1], {KA_WS}")
    t0,t1,t2,t3=TM,TM+1,TM+2,TM+3
    l=VL
    a(f"v_lshrrev_b32 v{t0}, 6, v0")
    a(f"v_and_b32 v{l}, 63, v0")
    a("s_nop 0")
    a(f"v_readfirstlane_b32 s{SW}, v{t0}")
    a(f"v_lshlrev_b32 v{VKA}, 4, v{l}")
    a(f"v_and_b32 v{t0}, 31, v{l}")
    a(f"v_lshlrev_b32 v{t1}, 3, v{t0}")
    a(f"v_add_u32 v{VKT}, {L_KT}, v{t1}")
    a(f"v_min_u32 v{t2}, 18, v{t0}")
    a(f"v_lshlrev_b32 v{t2}, 4, v{t2}")
    a(f"v_lshrrev_b32 v{t3}, 5, v{l}")
    a(f"v_mul_u32_u24 v{t3}, 304, v{t3}")
    a(f"v_add3_u32 v{VVA}, v{t2}, v{t3}, v{t3}") if False else None
    a(f"v_add_u32 v{VVA}, v{t2}, v{t3}")
    a(f"v_add_u32 v{VVA}, {L_VT}, v{VVA}")
    a(f"s_lshl_b32 s{SW1K}, s{SW}, 10")
    a(f"s_add_u32 s{SWL}, s{SW}, 16")
    a(f"s_min_u32 s{SWL}, s{SWL}, 18")
    a(f"s_lshl_b32 s{SWL}, s{SWL}, 10")
    a(f"s_lshl_b32 s{STMP}, s{SH}, 16")
    a(f"s_add_u32 s{SGK}, s{STMP}, s{SW1K}")
    a(f"s_add_u32 s{SGK}, s{SGK}, {WS_KM}")
    a(f"s_lshl_b32 s{SGT}, s{SH}, 14")
    a(f"s_add_u32 s{SGT}, s{SGT}, s{SW1K}")
    a(f"s_add_u32 s{SGT}, s{SGT}, {WS_KT}")
    a(f"s_mul_i32 s{SGV}, s{SH}, {VT_HEAD}")
    a(f"s_add_u32 s{SGV}, s{SGV}, {WS_VT}")
    a(f"s_add_u32 s{SGVL}, s{SGV}, s{SWL}")
    a(f"s_add_u32 s{SGV}, s{SGV}, s{SW1K}")
    a(f"s_lshl_b32 s{SC0}, s{SQG}, 4")
    a(f"s_lshl_b32 s{SC1}, s{SW}, 2")
    a(f"s_add_u32 s{SC0}, s{SC0}, s{SC1}")
    SQB=58
    a(f"s_mov_b32 s{SQB}, s{SC0}")
    a(f"s_lshl_b32 s{SC1}, s{SC0}, 10")
    a(f"s_add_u32 s{SC1}, s{SC1}, s{STMP}")
    if WS_QM: a(f"s_add_u32 s{SC1}, s{SC1}, {WS_QM}")
    a(f"s_lshl_b32 s{SC0}, s{SC0}, 8")
    a(f"s_lshl_b32 s{STMP}, s{SH}, 14")
    a(f"s_add_u32 s{SC0}, s{SC0}, s{STMP}")
    a(f"s_add_u32 s{SC0}, s{SC0}, {WS_QT}")
    a("s_waitcnt lgkmcnt(0)")
    a(f"s_mov_b32 s{SWS+2}, 0x10000000")
    a(f"s_mov_b32 s{SWS+3}, 0x00020000")
    ld_mod=opt.get('ldmod','')
    for j in range(4):
        a(f"buffer_load_dwordx4 {vr(QM+4*j,4)}, v{VKA}, s[{SWS}:{SWS+3}], s{SC1} offen offset:{1024*j} {ld_mod}")
    for j in range(4):
        a(f"buffer_load_dword v{QRAW+j}, v{t1}, s[{SWS}:{SWS+3}], s{SC0} offen offset:{256*j} {ld_mod}")
    for s in range(4):
        items=[]
        for n in range(4): items.append((SW1K, L_KM+s*16384+n*4096, SGK, s*16384+n*4096))
        items.append((SW1K, L_KT+s*4096, SGT, s*4096))
        for n in range(4): items.append((SW1K, L_VT+s*19456+n*4096, SGV, s*19456+n*4096))
        items.append((SWL, L_VT+s*19456, SGVL, s*19456))
        for (ml,lo,gs,go) in items:
            a(f"s_add_u32 m0, s{ml}, {lo}")
            a(f"s_add_u32 s{STMP}, s{gs}, {go}")
            a(f"buffer_load_dwordx4 v{VKA}, s[{SWS}:{SWS+3}], s{STMP} offen lds {ld_mod}")
    a(f"v_bfe_u32 v{t0}, v{l}, 4, 1")
    a(f"v_mul_u32_u24 v{t0}, 18432, v{t0}")
    a(f"v_and_b32 v{t2}, 15, v{l}")
    a(f"v_lshlrev_b32 v{t2}, 4, v{t2}")
    a(f"v_add_u32 v{VOT}, v{t0}, v{t2}")
    a(f"v_lshrrev_b32 v{t3}, 5, v{l}")
    a(f"v_lshlrev_b32 v{t3}, 8, v{t3}")
    a(f"v_add_u32 v{VOM}, v{VOT}, v{t3}")
    a(f"v_mov_b32 v{t0}, 0x80000000")
    a(f"v_cmp_gt_u32 vcc, 32, v{l}")
    a(f"v_cndmask_b32 v{VOT}, v{t0}, v{VOT}, vcc")
    a(f"s_mov_b32 s{SNKB}, {opt.get('nkb0',1)}")
    a(f"s_mov_b32 s{SBIAS}, {fbits(BIAS)}")
    a(f"s_mov_b32 s{SBAR}, 7")
    a(f"s_mov_b32 s{SFLAG}, 0")
    ST(a,0)
    a("s_waitcnt vmcnt(30)")
    a("s_barrier")
    ST(a,1)
    a(f"v_cmp_gt_u32 vcc, 32, v{l}")
    for j in range(4): a(f"v_cndmask_b32 v{QRAW+j}, 0, v{QRAW+j}, vcc")
    Lmax=a.newlabel('L_att_max'); Lmaxloop=a.newlabel('L_att_maxloop')
    a.label(Lmax)
    for j in range(4):
        a(f"v_mov_b32 v{QT+2*j}, v{QRAW+j}")
        a(f"v_mov_b32 v{QT+2*j+1}, 0")
        a(f"v_mov_b32 v{MX+j}, 0xff800000")
    a(f"v_mov_b32 v{t0+60}, v{VKA}") if False else None
    PA=Pb; PB=Pb+1
    a(f"v_mov_b32 v{PA}, v{VKA}")
    a(f"v_mov_b32 v{PB}, v{VKT}")
    a(f"s_mov_b32 s{SCNT}, 0")
    a.label(Lmaxloop)
    a(f"ds_read_b128 {vr(KA,4)}, v{PA}")
    a(f"ds_read_b64 {vr(KT,2)}, v{PB}")
    a(f"v_add_u32 v{PA}, 1024, v{PA}")
    a(f"v_add_u32 v{PB}, 256, v{PB}")
    a("s_waitcnt lgkmcnt(0)")
    for j in range(4):
        a(f"v_mfma_f32_32x32x16_bf16 {vr(TM+16*j,16)}, {vr(KA,4)}, {vr(QM+4*j,4)}, 0")
        a(f"v_mfma_f32_32x32x8_bf16 {vr(TM+16*j,16)}, {vr(KT,2)}, {vr(QT+2*j,2)}, {vr(TM+16*j,16)}")
    for j in range(4):
        if j==3: a("s_nop 11")
        for i in range(8):
            a(f"v_max3_f32 v{MX+j}, v{MX+j}, v{TM+16*j+2*i}, v{TM+16*j+2*i+1}")
    a(f"s_add_u32 s{SCNT}, s{SCNT}, 1")
    a(f"s_cmp_lt_u32 s{SCNT}, s{SNKB}")
    a(f"s_cbranch_scc1 {Lmaxloop}")
    a(f"v_cmp_gt_u32 vcc, 32, v{l}")
    for j in range(4):
        m=MX+j; u=TM;
        a(f"v_mov_b32 v{u}, v{m}")
        a("s_nop 1")
        a(f"v_permlane32_swap_b32 v{m}, v{u}")
        a("s_nop 1")
        a(f"v_max_f32 v{m}, v{m}, v{u}")
        a(f"v_add_f32 v{m}, s{SBIAS}, v{m}")
        a(f"v_sub_f32 v{m}, 0, v{m}")
        a(f"v_cvt_pk_bf16_f32 v{u}, v{m}, v{m}")
        a(f"v_and_b32 v{u+1}, 0xffff0000, v{u}")
        a(f"v_sub_f32 v{u+2}, v{m}, v{u+1}")
        a(f"v_cvt_pk_bf16_f32 v{u+3}, v{u+2}, v{u+2}")
        a(f"v_and_b32 v{u+4}, 0xffff0000, v{u+3}")
        a(f"v_sub_f32 v{u+5}, v{u+2}, v{u+4}")
        a(f"v_cvt_pk_bf16_f32 v{u+5}, v{u+5}, v{u+5}")
        a(f"v_and_b32 v{u+5}, 0xffff, v{u+5}")
        a(f"v_and_b32 v{u}, 0xffff, v{u}")
        a(f"v_or_b32 v{u}, v{u}, v{u+4}")
        a(f"v_cndmask_b32 v{QT+2*j+1}, v{u+5}, v{u}, vcc")
    ST(a,2)
    for i in range(64): a(f"v_mov_b32 v{Ob+i}, 0")
    for i in range(8): a(f"v_mov_b32 v{P(1)+i}, 0")
    for i in range(4): a(f"v_mov_b32 v{VA1+4+i}, 0")
    AK=TM; AT=TM+1; AV=TM+2
    a(f"v_mov_b32 v{AK}, v{VKA}\nv_mov_b32 v{AT}, v{VKT}\nv_mov_b32 v{AV}, v{VVA}")
    def rdK(par,off): return [f"ds_read_b128 {vr(KA+4*par,4)}, v{AK} offset:{off*1024}", f"ds_read_b64 {vr(KT+2*par,2)}, v{AT} offset:{off*256}"]
    def rdV(par,off): return [f"ds_read_b128 {vr(VA0+4*par,4)}, v{AV} offset:{off*1216}", f"ds_read_b128 {vr(VA1+4*par,4)}, v{AV} offset:{off*1216+608}"]
    for x in rdK(0,0)+rdV(0,0): a(x)
    a("s_waitcnt lgkmcnt(0)")
    def qk16(t,par,j): return f"v_mfma_f32_32x32x16_bf16 {vr(S(t),16)}, {vr(KA+4*par,4)}, {vr(QM+4*j,4)}, 0"
    def qk8(t,par,j):  return f"v_mfma_f32_32x32x8_bf16 {vr(S(t),16)}, {vr(KT+2*par,2)}, {vr(QT+2*j,2)}, {vr(S(t),16)}"
    def pv(h,t,par,j): return f"v_mfma_f32_32x32x16_bf16 {vr(O(j),16)}, {vr((VA0,VA1)[h]+4*par,4)}, {vr(P(t)+4*h,4)}, {vr(O(j),16)}"
    a(qk16(0,0,0)); a(qk8(0,0,0))
    a("s_nop 7\ns_nop 3")
    a(f"s_mov_b32 s{SCNT}, 0")
    Lloop=a.newlabel('L_att_loop'); Lnb=a.newlabel('L_att_nobar')
    a.raw(".p2align 6"); a.label(Lloop)
    a(f"s_cmp_lg_u32 s{SCNT}, s{SBAR}")
    a(f"s_cbranch_scc1 {Lnb}")
    a("s_waitcnt vmcnt(0)")
    a("s_barrier")
    a.label(Lnb)
    for t in range(8):
        kb=t//4; j=t%4; par=kb
        tn=t+1; kbn=(tn//4); jn=tn%4; parn=kbn%2
        tp=t-1; jp=tp%4; parp=(tp//4)%2
        s=S(t); p=P(t)
        extra={0:[],1:[],2:[],3:[]}
        if j==0: extra[0]=rdK(1-par,kb+1)
        if j==1: extra[0]=rdV(1-par,kb+1)
        if t==6: extra[0]=[f"v_add_u32 v{AK}, 2048, v{AK}", f"v_add_u32 v{AT}, 512, v{AT}"]
        if t==7: extra[1]=[f"v_add_u32 v{AV}, 2432, v{AV}"]
        if j==3: a("s_waitcnt lgkmcnt(0)")
        M=[qk16(tn,parn,jn), qk8(tn,parn,jn), pv(1,tp,parp,jp), pv(0,t,par,j)]
        for g in range(4):
            a(M[g])
            for x in extra[g]: a(x)
            for i in range(4): a(f"v_exp_f32 v{s+4*g+i}, v{s+4*g+i}")
            a(f"v_cvt_pk_bf16_f32 v{p+2*g}, v{s+4*g}, v{s+4*g+1}")
            a(f"v_cvt_pk_bf16_f32 v{p+2*g+1}, v{s+4*g+2}, v{s+4*g+3}")
    a(f"s_add_u32 s{SCNT}, s{SCNT}, 1")
    a(f"s_cmp_lt_u32 s{SCNT}, 32")
    a(f"s_cbranch_scc1 {Lloop}")
    a("s_nop 1")
    a(pv(1,7,1,3))
    ST(a,3)
    a("s_nop 7\ns_nop 3")
    a("s_waitcnt lgkmcnt(0)")
    Lok=a.newlabel('L_att_ok')
    a(f"s_cmp_lg_u32 s{SFLAG}, 0")
    a(f"s_cbranch_scc1 {Lok}")
    SA=60+8
    a(f"s_mov_b64 s[{SA}:{SA+1}], 0")
    lo_=fbits(2.0**-90); hi_=fbits(2.0**110)
    a(f"s_mov_b32 s{STMP}, 0x207")
    for j in range(4):
        lreg=O(j)+10
        a(f"v_cmp_nlt_f32 vcc, {lo_}, v{lreg}")
        a(f"s_or_b64 s[{SA}:{SA+1}], s[{SA}:{SA+1}], vcc")
        a(f"v_cmp_ngt_f32 vcc, {hi_}, v{lreg}")
        a(f"s_or_b64 s[{SA}:{SA+1}], s[{SA}:{SA+1}], vcc")
        for i in range(10):
            a(f"v_cmp_class_f32 vcc, v{O(j)+i}, s{STMP}") if False else None
            a(f"v_cmp_class_f32 s[{SA+2}:{SA+3}], v{O(j)+i}, s{STMP}")
            a(f"s_or_b64 s[{SA}:{SA+1}], s[{SA}:{SA+1}], s[{SA+2}:{SA+3}]")
    if opt.get('forcefb'): a(f"s_mov_b64 s[{SA}:{SA+1}], 1")
    a(f"s_cmp_eq_u64 s[{SA}:{SA+1}], 0")
    a(f"s_cbranch_scc1 {Lok}")
    a(f"s_mov_b32 s{SFLAG}, 1")
    a(f"s_mov_b32 s{SNKB}, 64")
    a(f"s_mov_b32 s{SBIAS}, 0")
    a(f"s_mov_b32 s{SBAR}, 99")
    a(f"s_branch {Lmax}")
    a.label(Lok)
    a(f"s_mul_i32 s{SC0}, s{SQB}, {2*18432}")
    a(f"s_add_u32 s{SC0}, s{SC0}, {WS_O}")
    a(f"s_lshr_b32 s{SC1}, s{SH}, 1")
    a(f"s_lshl_b32 s{SC1}, s{SC1}, 10")
    a(f"s_and_b32 s{STMP}, s{SH}, 1")
    a(f"s_lshl_b32 s{STMP}, s{STMP}, 9")
    a(f"s_add_u32 s{SC1}, s{SC1}, s{STMP}")
    a(f"s_add_u32 s{SC1}, s{SC1}, s{SC0}")
    a(f"s_lshr_b32 s{STMP}, s{SH}, 2")
    a(f"s_lshl_b32 s{STMP}, s{STMP}, 8")
    a(f"s_add_u32 s{SC0}, s{SC0}, s{STMP}")
    a(f"s_and_b32 s{STMP}, s{SH}, 3")
    a(f"s_lshl_b32 s{STMP}, s{STMP}, 2")
    a(f"s_add_u32 s{SC0}, s{SC0}, s{STMP}")
    a(f"s_add_u32 s{SC0}, s{SC0}, {16*1024}")
    st_mod=opt.get('stmod','')
    for j in range(4):
        o=O(j); r=TM+8*j
        a(f"v_rcp_f32 v{r}, v{o+10}")
        a("s_nop 0")
        for i in range(10): a(f"v_mul_f32 v{o+i}, v{r}, v{o+i}")
        for i in range(4): a(f"v_cvt_pk_bf16_f32 v{r+4+i if False else Pb+4*(j%2)+i}, v{o+2*i}, v{o+2*i+1}") if False else None
        q=TM+40+8*j
        for i in range(5): a(f"v_cvt_pk_bf16_f32 v{q+i}, v{o+2*i}, v{o+2*i+1}")
        a(f"buffer_store_dwordx4 {vr(q,4)}, v{VOM}, s[{SWS}:{SWS+3}], s{SC1} offen {st_mod}")
        a(f"buffer_store_dword v{q+4}, v{VOT}, s[{SWS}:{SWS+3}], s{SC0} offen {st_mod}")
        if j<3:
            a(f"s_add_u32 s{SC0}, s{SC0}, {2*18432}")
            a(f"s_add_u32 s{SC1}, s{SC1}, {2*18432}")
    a("s_waitcnt vmcnt(0)")
```

```python
from asmlib import *
S_=2048; D_=576; F_=4608; H_=32; DH=18
KA_X=0; KA_WQKV=8; KA_WO=16; KA_WG=32; KA_WU=40; KA_WD=48; KA_OUT=56; KA_DBG=64; KA_WS=72
WS_QM=0
WS_KM=WS_QM+32*65536
WS_QT=WS_KM+32*65536
WS_KT=WS_QT+32*2048*8
WS_VT=WS_KT+32*2048*8
VT_HEAD=128*608
WS_O =WS_VT+32*VT_HEAD
WS_RHO2=WS_O+2048*1152
WS_PART=WS_RHO2+2048*4
PART_SZ=2048*1152
WS_SYNC=WS_PART+16*PART_SZ
def srd(a, s, lo, hi, nbytes):
    if s!=lo: a(f"s_mov_b32 s{s}, s{lo}")
    if s+1!=hi: a(f"s_mov_b32 s{s+1}, s{hi}")
    a(f"s_mov_b32 s{s+2}, {nbytes}")
    a(f"s_mov_b32 s{s+3}, 0x00020000")
def add64(a, s, val):
    lo = val & 0xffffffff; hi = (val>>32) & 0xffffffff
    a(f"s_add_u32 s{s}, s{s}, 0x{lo:x}")
    a(f"s_addc_u32 s{s+1}, s{s+1}, 0x{hi:x}")
def emit_ln(a, X, nks, T, s_ones, rho_out, nload_after, first_wait=True, rho_sq=False, waits=True):
    Sx=T[0:4]; Q=T[4:8]; t0,t1,t2,t3=T[8:12]
    n=0
    for ks in range(nks):
        if ks%3==0 and waits:
            last=min(ks+2,nks-1)
            a(f"s_waitcnt vmcnt({nload_after + (nks-1-last)})")
        for i in range(4):
            r=X(ks)+i
            c = '0' if n<4 else f"v{Sx[n%4]}"
            a(f"v_dot2_f32_bf16 v{Sx[n%4]}, v{r}, s{s_ones}, {c}")
            c = '0' if n<4 else f"v{Q[n%4]}"
            a(f"v_dot2_f32_bf16 v{Q[n%4]}, v{r}, v{r}, {c}")
            n+=1
    a("s_nop 2")
    a(f"v_add_f32 v{Sx[0]}, v{Sx[0]}, v{Sx[1]}")
    a(f"v_add_f32 v{Q[0]}, v{Q[0]}, v{Q[1]}")
    a(f"v_add_f32 v{Sx[2]}, v{Sx[2]}, v{Sx[3]}")
    a(f"v_add_f32 v{Q[2]}, v{Q[2]}, v{Q[3]}")
    a(f"v_add_f32 v{Sx[0]}, v{Sx[0]}, v{Sx[2]}")
    a(f"v_add_f32 v{Q[0]}, v{Q[0]}, v{Q[2]}")
    for sw in ('v_permlane16_swap_b32','v_permlane32_swap_b32'):
        a(f"v_mov_b32 v{Sx[1]}, v{Sx[0]}")
        a(f"v_mov_b32 v{Q[1]}, v{Q[0]}")
        a("s_nop 1")
        a(f"{sw} v{Sx[0]}, v{Sx[1]}")
        a(f"{sw} v{Q[0]}, v{Q[1]}")
        a("s_nop 1")
        a(f"v_add_f32 v{Sx[0]}, v{Sx[0]}, v{Sx[1]}")
        a(f"v_add_f32 v{Q[0]}, v{Q[0]}, v{Q[1]}")
    inv = 1.0/576
    import struct
    fb = lambda x: '0x%08x'%struct.unpack('<I',struct.pack('<f',x))[0]
    m=Sx[0]; var=Q[0]
    a(f"v_mul_f32 v{m}, {fb(inv)}, v{m}")
    a(f"v_mul_f32 v{var}, {fb(inv)}, v{var}")
    a(f"v_mul_f32 v{t0}, v{m}, v{m}")
    a(f"v_sub_f32 v{var}, v{var}, v{t0}")
    a(f"v_max_f32 v{var}, 0, v{var}")
    a(f"v_add_f32 v{var}, {fb(1e-5)}, v{var}")
    a(f"v_rsq_f32 v{t0}, v{var}")
    a("s_nop 0")
    a(f"v_cvt_pk_bf16_f32 v{t1}, v{t0}, v{t0}")
    selLo=Sx[1]; selHi=Sx[2]; cc=Sx[3]
    a(f"v_and_b32 v{selLo}, 0xffff, v{t1}")
    a(f"v_and_b32 v{selHi}, 0xffff0000, v{t1}")
    a(f"v_rcp_f32 v{t2}, v{selHi}")
    a(f"v_mul_f32 v{cc}, v{m}, v{selHi}")
    a(f"v_sub_f32 v{cc}, 0, v{cc}")
    a(f"v_mul_f32 v{rho_out}, v{t0}, v{t2}")
    if rho_sq: a(f"v_mul_f32 v{rho_out}, v{rho_out}, v{rho_out}")
    tl=[Q[0],Q[1],Q[2],Q[3],t0,t1,t2,t3]
    for ks in range(nks):
        for i in range(4):
            r=X(ks)+i
            a(f"v_dot2_f32_bf16 v{tl[2*i]}, v{r}, v{selLo}, v{cc}")
            a(f"v_dot2_f32_bf16 v{tl[2*i+1]}, v{r}, v{selHi}, v{cc}")
        for i in range(4):
            r=X(ks)+i
            a(f"v_cvt_pk_bf16_f32 v{r}, v{tl[2*i]}, v{tl[2*i+1]}")

import struct as _st
def fbits(x): return '0x%08x'%_st.unpack('<I',_st.pack('<f',x))[0]
```

```python
from common import *
import math
OB=0; PP=72; XR=168; SEL=180; WFB=188; NW=6; DLOOK=5
VB=212
VD=216
VL=222; VP=223; VXO=224; VRHO=225
VT=226
SX=4; SWO=8; SWS=12; SOUT=16
SRT=44; SCG=45; SW=37; STMP=42; SC0=40; SC1=41; SB=46; SM=47; SKO=48; SPO=49
NR=8
def WF(i): return WFB+4*(i%NW)
def emit_fin(a, opt={}):
    nr=opt.get('nr',NR)
    ST=opt.get('st', lambda a,i: None)
    a(f"s_load_dwordx2 s[{SX}:{SX+1}], s[0:1], {KA_X}")
    a(f"s_load_dwordx2 s[{SWO}:{SWO+1}], s[0:1], {KA_WO}")
    a(f"s_load_dwordx2 s[{SWS}:{SWS+1}], s[0:1], {KA_WS}")
    a(f"s_load_dwordx2 s[{SOUT}:{SOUT+1}], s[0:1], {KA_OUT}")
    t0,t1,t2,t3,t4,t5=[VT+i for i in range(6)]
    l=VL
    a(f"v_lshrrev_b32 v{t0}, 6, v0")
    a(f"v_and_b32 v{l}, 63, v0")
    a("s_nop 0")
    a(f"v_readfirstlane_b32 s{SW}, v{t0}")
    a(f"v_lshlrev_b32 v{VP}, 4, v{l}")
    a(f"s_lshl_b32 s{SB}, s{SRT}, 2")
    a(f"s_add_u32 s{SB}, s{SB}, s{SW}")
    a(f"s_mul_i32 s{SC0}, s{SB}, 18432")
    a(f"s_mul_i32 s{SC1}, s{SCG}, 3072")
    a(f"s_add_u32 s{SPO}, s{SC0}, s{SC1}")
    a(f"s_add_u32 s{SPO}, s{SPO}, {WS_PART}")
    a(f"s_add_u32 s{SC0}, s{SC0}, {WS_O}")
    a("s_waitcnt lgkmcnt(0)")
    for s,nb in ((SX,2048*1152),(SWO,576*1152),(SWS,0x10000000),(SOUT,2048*1152)):
        a(f"s_mov_b32 s{s+2}, {nb}")
        a(f"s_mov_b32 s{s+3}, 0x00020000")
    for c in range(nr):
        for i in range(3):
            a(f"buffer_load_dwordx4 {vr(PP+4*(3*c+i),4)}, v{VP}, s[{SWS}:{SWS+3}], s{SPO} offen offset:{1024*i}")
        if c<nr-1: a(f"s_add_u32 s{SPO}, s{SPO}, {PART_SZ}")
    a(f"s_lshl_b32 s{STMP}, s{SW}, 6")
    for i in range(3):
        a(f"v_add_u32 v{t0}, s{STMP}, v{l}")
        if i: a(f"v_add_u32 v{t0}, {256*i}, v{t0}")
        a(f"v_mul_u32_u24 v{t1}, 683, v{t0}")
        a(f"v_lshrrev_b32 v{t1}, 13, v{t1}")
        a(f"v_mul_u32_u24 v{t2}, 12, v{t1}")
        a(f"v_sub_u32 v{t2}, v{t0}, v{t2}")
        a(f"v_bfe_u32 v{t3}, v{t1}, 2, 1")
        a(f"v_lshlrev_b32 v{t3}, 1, v{t3}")
        a(f"v_xor_b32 v{t2}, v{t2}, v{t3}")
        a(f"v_lshlrev_b32 v{t2}, 4, v{t2}")
        a(f"v_lshrrev_b32 v{t3}, 5, v{t1}")
        a(f"v_bfe_u32 v{t4}, v{t1}, 4, 1")
        a(f"v_bfe_u32 v{t5}, v{t1}, 2, 2")
        u0,u1=VT+6,VT+7
        a(f"v_mul_u32_u24 v{u0}, 36, v{t3}")
        a(f"v_lshrrev_b32 v{u1}, 1, v{t5}")
        a(f"v_mul_u32_u24 v{u1}, 18, v{u1}")
        a(f"v_add_u32 v{u0}, v{u0}, v{u1}")
        a(f"v_and_b32 v{u1}, 1, v{t5}")
        a(f"v_lshlrev_b32 v{u1}, 2, v{u1}")
        a(f"v_add_u32 v{u0}, v{u0}, v{u1}")
        a(f"v_lshlrev_b32 v{u1}, 3, v{t4}")
        a(f"v_add_u32 v{u0}, v{u0}, v{u1}")
        a(f"v_and_b32 v{u1}, 3, v{t1}")
        a(f"v_add_u32 v{u0}, v{u0}, v{u1}")
        a(f"v_mul_u32_u24 v{u0}, 1152, v{u0}")
        a(f"v_add_u32 v{VD+i}, v{u0}, v{t2}")
        a(f"v_lshlrev_b32 v{u0}, 4, v{t3}")
        a(f"v_lshlrev_b32 v{u1}, 2, v{t5}")
        a(f"v_add_u32 v{u0}, v{u0}, v{u1}")
        a(f"v_lshlrev_b32 v{u1}, 1, v{t4}")
        a(f"v_add_u32 v{u0}, v{u0}, v{u1}")
        a(f"v_bfe_u32 v{u1}, v{t1}, 1, 1")
        a(f"v_add_u32 v{u0}, v{u0}, v{u1}")
        a(f"v_mul_u32_u24 v{u0}, 18, v{u0}")
        a(f"v_and_b32 v{u1}, 1, v{t1}")
        a(f"v_add3_u32 v{u0}, v{u0}, v{u1}, 16")
        a(f"v_mul_u32_u24 v{u0}, 1152, v{u0}")
        a(f"v_add_u32 v{VD+3+i}, v{u0}, v{t2}")
    a(f"s_mul_i32 s{SKO}, s{SCG}, 192")
    a(f"s_lshl_b32 s{SM}, s{SW}, 10")
    for kp in range(9):
        for i in range(3):
            a(f"s_add_u32 m0, s{SM}, {kp*12288+i*4096}")
            if kp==8 and i==0: a(f"s_mul_i32 s{SKO}, s{SCG}, 192")
            else: a("s_nop 0")
            a(f"buffer_load_dwordx4 v{VD+i+(3 if kp==8 else 0)}, s[{SWO}:{SWO+3}], s{SKO} offen lds")
        if kp<7: a(f"s_add_u32 s{SKO}, s{SKO}, {72*1152}")
    nfirst=63-3*nr-27
    for ks in range(nfirst):
        a(f"buffer_load_dwordx4 {vr(OB+4*ks,4)}, v{VP}, s[{SWS}:{SWS+3}], s{SC0} offen offset:{(ks%4)*1024}")
        if ks%4==3: a(f"s_add_u32 s{SC0}, s{SC0}, 4096")
    n_,g_=t0,t1
    a(f"v_and_b32 v{n_}, 15, v{l}")
    a(f"v_lshrrev_b32 v{g_}, 4, v{l}")
    a(f"v_mul_u32_u24 v{VXO}, 1152, v{n_}")
    a(f"v_lshlrev_b32 v{t2}, 3, v{g_}")
    a(f"v_add_u32 v{VXO}, v{VXO}, v{t2}")
    a(f"v_lshrrev_b32 v{t2}, 2, v{n_}")
    a(f"v_and_b32 v{t3}, 3, v{n_}")
    a(f"v_mov_b32 v{t4}, 0x3f80")
    a(f"v_and_b32 v{t5}, 1, v{t3}")
    a(f"v_lshlrev_b32 v{t5}, 4, v{t5}")
    a(f"v_lshlrev_b32 v{t4}, v{t5}, v{t4}")
    a(f"v_cmp_eq_u32 vcc, v{t2}, v{g_}")
    a(f"v_cndmask_b32 v{t4}, 0, v{t4}, vcc")
    a(f"v_cmp_gt_u32 vcc, 2, v{t3}")
    a(f"v_cndmask_b32 v{SEL+2}, 0, v{t4}, vcc")
    a(f"v_cndmask_b32 v{SEL+3}, v{t4}, 0, vcc") if False else None
    a(f"v_sub_u32 v{SEL+3}, v{t4}, v{SEL+2}")
    for i in (0,1,4,5): a(f"v_mov_b32 v{SEL+i}, 0")
    a(f"v_lshrrev_b32 v{t2}, 2, v{l}")
    a(f"v_mul_u32_u24 v{t2}, 192, v{t2}")
    a(f"v_and_b32 v{t3}, 3, v{l}")
    a(f"v_lshlrev_b32 v{t3}, 3, v{t3}")
    a(f"v_add_u32 v{t2}, v{t2}, v{t3}")
    a(f"v_and_b32 v{t3}, 1, v{g_}")
    a(f"v_lshlrev_b32 v{t3}, 5, v{t3}")
    a(f"v_add_u32 v{VB}, v{t2}, v{t3}")
    a(f"v_sub_u32 v{VB+1}, v{t2}, v{t3}")
    a(f"v_add_u32 v{VB+1}, 32, v{VB+1}")
    a(f"v_add_u32 v{VB+2}, 61440, v{VB}")
    a(f"v_add_u32 v{VB+3}, 61440, v{VB+1}")
    ST(a,0)
    nout=63
    for c in range(nr):
        a(f"s_waitcnt vmcnt({63-3*(c+1)+ (3*c if False else 0) + extra_issued(c, nfirst)})") if False else None
    issued=63
    rest=[('o',ks) for ks in range(nfirst,18)]+[('x',i) for i in range(6)]+[('r',0)]
    a(f"s_mul_i32 s{SC1}, s{SB}, {16*1152}")
    a(f"s_mul_i32 s{STMP}, s{SCG}, 192")
    a(f"s_add_u32 s{SC1}, s{SC1}, s{STMP}")
    a(f"s_lshl_b32 s{SKO}, s{SB}, 6")
    a(f"s_add_u32 s{SKO}, s{SKO}, {WS_RHO2}")
    a(f"v_lshlrev_b32 v{t2}, 2, v{n_}")
    def issue(it):
        k,i=it
        if k=='o':
            a(f"buffer_load_dwordx4 {vr(OB+4*i,4)}, v{VP}, s[{SWS}:{SWS+3}], s{SC0} offen offset:{(i%4)*1024}")
            if i%4==3: a(f"s_add_u32 s{SC0}, s{SC0}, 4096")
        elif k=='x':
            a(f"buffer_load_dwordx2 {vr(XR+2*i,2)}, v{VXO}, s[{SX}:{SX+3}], s{SC1} offen offset:{32*i}")
        else:
            a(f"buffer_load_dword v{VRHO}, v{t2}, s[{SWS}:{SWS+3}], s{SKO} offen")
    for c in range(nr):
        a(f"s_waitcnt vmcnt({issued-3*(c+1)})")
        for _ in range(3):
            if rest: issue(rest.pop(0)); issued+=1
        for i in range(3):
            for h in (0,1):
                D=ar(24+4*(2*i+h),4)
                a(f"v_mfma_f32_16x16x32_bf16 {D}, {vr(SEL+2-2*h,4)}, {vr(PP+4*(3*c+i),4)}, {'0' if c==0 else D}")
    assert not rest
    ST(a,1)
    a("s_waitcnt vmcnt(7)")
    a("s_barrier")
    ST(a,2)
    U=[(ks,b) for ks in range(18) for b in range(6)]
    NU=len(U)
    def rd(k,j):
        ks,b=U[k]
        hi=ks>=10
        off=(ks-(10 if hi else 0))*6144+j*3072+(b&~1)*32
        return f"ds_read_b64_tr_b16 {vr(WF(k)+2*j,2)}, v{VB+(b&1)+(2 if hi else 0)} offset:{off}"
    for k in range(DLOOK): a(rd(k,0)); a(rd(k,1))
    for k,(ks,b) in enumerate(U):
        rem=min(DLOOK,NU-k)
        a(f"s_waitcnt lgkmcnt({2*(rem-1)})")
        D=ar(4*b,4)
        a(f"v_mfma_f32_16x16x32_bf16 {D}, {vr(WF(k),4)}, {vr(OB+4*ks,4)}, {'0' if ks==0 else D}")
        if k+DLOOK<NU: a(rd(k+DLOOK,0)); a(rd(k+DLOOK,1))
    ST(a,3)
    a("s_waitcnt vmcnt(0)")
    nl2e=fbits(-math.log2(math.e))
    a(f"s_mov_b32 s{STMP}, {nl2e}")
    for b in range(6):
        T=4+16*(b%4)
        for e in range(4): a(f"v_accvgpr_read_b32 v{T+e}, a{24+4*b+e}")
        for e in range(4): a(f"v_accvgpr_read_b32 v{T+4+e}, a{4*b+e}")
        for e in range(4): a(f"v_mul_f32 v{T+e}, v{VRHO}, v{T+e}")
        for e in range(4): a(f"v_mul_f32 v{T+8+e}, s{STMP}, v{T+e}")
        for e in range(4): a(f"v_exp_f32 v{T+8+e}, v{T+8+e}")
        for e in range(4): a(f"v_add_f32 v{T+8+e}, 1.0, v{T+8+e}")
        for e in range(4): a(f"v_rcp_f32 v{T+8+e}, v{T+8+e}")
        for e in range(4): a(f"v_mul_f32 v{T+e}, v{T+e}, v{T+4+e}")
        x=XR+2*b
        a(f"v_lshlrev_b32 v{T+12}, 16, v{x}")
        a(f"v_and_b32 v{T+13}, 0xffff0000, v{x}")
        a(f"v_lshlrev_b32 v{T+14}, 16, v{x+1}")
        a(f"v_and_b32 v{T+15}, 0xffff0000, v{x+1}")
        for e in range(4): a(f"v_fma_f32 v{T+e}, v{T+e}, v{T+8+e}, v{T+12+e}")
        a(f"v_cvt_pk_bf16_f32 v{T+4}, v{T}, v{T+1}")
        a(f"v_cvt_pk_bf16_f32 v{T+5}, v{T+2}, v{T+3}")
        a(f"buffer_store_dwordx2 {vr(T+4,2)}, v{VXO}, s[{SOUT}:{SOUT+3}], s{SC1} offen offset:{32*b}")
    a("s_waitcnt vmcnt(0)")
```

```python
import re
def parse_regs(tok):
    tok = tok.strip()
    m = re.fullmatch(r'([vas])\[(\d+):(\d+)\]', tok)
    if m: return [(m.group(1), i) for i in range(int(m.group(2)), int(m.group(3))+1)]
    m = re.fullmatch(r'([vas])(\d+)', tok)
    if m: return [(m.group(1), int(m.group(2)))]
    if tok in ('vcc',): return [('s','vcc')]
    if tok == 'm0': return [('s','m0')]
    if tok == 'exec': return [('s','exec')]
    return []
TRANS = ('v_exp_f32','v_log_f32','v_rcp_f32','v_rsq_f32','v_sqrt_f32','v_sin_f32','v_cos_f32')
def split_ops(s):
    out=[];d=0;cur=''
    for ch in s:
        if ch=='[': d+=1
        if ch==']': d-=1
        if ch==',' and d==0: out.append(cur); cur=''
        else: cur+=ch
    if cur.strip(): out.append(cur)
    return [o.strip() for o in out]
class I: pass
def decode(line):
    line = line.split(';')[0].strip()
    if not line or line.endswith(':') or line.startswith('.'): return None
    parts = line.split(None,1)
    op = parts[0]; rest = parts[1] if len(parts)>1 else ''
    ops = split_ops(rest)
    toks=[]
    for o in ops:
        toks.append(o.split()[0] if o.split() else o)
    i = I(); i.op=op; i.text=line; i.w=[]; i.r=[]; i.kind='other'; i.passes=0; i.c=[]; i.ab=[]
    R = lambda t: parse_regs(t)
    if op.startswith('v_mfma'):
        i.kind='mfma'; i.w=R(toks[0]); i.ab=R(toks[1])+R(toks[2]); i.c=R(toks[3]); i.r=i.ab+i.c
        i.passes = 8 if '32x32' in op else 4
    elif op.startswith('v_cmp'):
        i.kind='valu'; i.w=R(toks[0]); i.r=sum((R(t) for t in toks[1:]),[])
    elif op.startswith('v_permlane') and 'swap' in op:
        i.kind='valu'; i.w=R(toks[0])+R(toks[1]); i.r=i.w[:]
    elif op.startswith('v_readfirstlane') or op.startswith('v_readlane'):
        i.kind='valu'; i.w=R(toks[0]); i.r=sum((R(t) for t in toks[1:]),[])
    elif op.startswith('v_'):
        i.kind='valu'; i.w=R(toks[0]); i.r=sum((R(t) for t in toks[1:]),[])
        if op.startswith('v_dot2c') or op.startswith('v_fmac') or op.startswith('v_mac'): i.r+=i.w
        if op.startswith('v_cndmask') and len(toks)==3: i.r+=[('s','vcc')]
        if '_co_' in op: i.w = R(toks[0])+R(toks[1]); i.r=sum((R(t) for t in toks[2:]),[])
    elif op.startswith('ds_read') or op.startswith('ds_bpermute') or op.startswith('ds_swizzle'):
        i.kind='ds'; i.w=R(toks[0]); i.r=sum((R(t) for t in toks[1:]),[])
    elif op.startswith('ds_write'):
        i.kind='ds'; i.r=sum((R(t) for t in toks),[])
    elif op.startswith('buffer_load') :
        i.kind='vmem'
        if ' lds' in line: i.r=sum((R(t) for t in toks),[])+[('s','m0')]; i.lds=True
        else: i.w=R(toks[0]); i.r=sum((R(t) for t in toks[1:]),[])
    elif op.startswith('buffer_store') or op.startswith('buffer_atomic'):
        i.kind='vmem'; i.r=sum((R(t) for t in toks),[]); i.store=True; i.data=R(toks[0])
    elif op.startswith('global_load'):
        i.kind='vmem'; i.w=R(toks[0]); i.r=sum((R(t) for t in toks[1:]),[])
    elif op.startswith('global_store') or op.startswith('global_atomic'):
        i.kind='vmem'; i.r=sum((R(t) for t in toks),[])
    elif op.startswith('s_nop'):
        i.kind='nop'; i.n=int(toks[0],0)+1
    elif op.startswith('s_'):
        i.kind='salu'
        if op in ('s_waitcnt','s_barrier','s_branch','s_endpgm','s_setprio','s_sleep') or op.startswith('s_cbranch') or op.startswith('s_cmp'):
            i.r=sum((R(t) for t in toks),[])
        else:
            i.w=R(toks[0]) if toks else []; i.r=sum((R(t) for t in toks[1:]),[])
    return i
def fix(a, name=''):
    for it in range(8):
        need={}
        n=check('\n'.join(a.l), name, 0, need)
        if n==0: return
        out=[]; k=0
        for ln in '\n'.join(a.l).split('\n'):
            d=decode(ln)
            if d is not None:
                if k in need: out.append(f'    s_nop {need[k]-1}')
                k+=1
            out.append(ln)
        a.l=out
    raise SystemExit('hazard fix did not converge')
def check(text, name='', maxrep=20, fixmap=None):
    ins=[]
    for ln in text.split('\n'):
        d=decode(ln)
        if d is not None: ins.append(d)
    pos=0; P=[]
    for d in ins:
        P.append(pos); pos += d.n if d.kind=='nop' else 1
    last={}
    errs=[]
    lastw={}
    lastc={}
    laststore={}
    def need(k, a, n, why):
        dist = P[k]-P[a]-(ins[a].n if ins[a].kind=='nop' else 1)
        if dist < n and fixmap is not None: fixmap[k]=max(fixmap.get(k,0), n-dist)
        if dist < n: errs.append(f"{name}: #{k} '{ins[k].text}' after #{a} '{ins[a].text}': dist {dist} < {n} ({why})")
    for k,d in enumerate(ins):
        for r in set(d.r):
            a=lastw.get(r)
            if a is None: continue
            p=ins[a]
            if p.kind=='mfma':
                n = 8 if p.passes==4 else 12
                if d.kind=='mfma':
                    if r in d.ab: need(k,a,n,'mfma D->AB')
                    elif r in d.c:
                        if d.c==p.w and d.passes==p.passes: pass
                        else: need(k,a,n-2,'mfma D->C partial')
                elif d.kind in('valu','vmem','ds'): need(k,a,n,'mfma D->read')
            elif p.kind=='valu':
                if d.kind=='mfma': need(k,a,2,'valu->mfma')
                if p.op in TRANS and d.kind=='valu' and d.op not in TRANS: need(k,a,1,'trans->valu')
                if p.op in TRANS and d.kind=='valu' and d.op in TRANS: pass
                if d.op.startswith('v_permlane'): need(k,a,2,'valu->permlane')
                if d.op.startswith('v_readfirstlane') or d.op.startswith('v_readlane'):
                    if r[0]=='v': need(k,a,1,'valu->readlane')
                if '_dpp' in d.text or 'row_' in d.text or 'quad_perm' in d.text: need(k,a,2,'valu->dpp')
                if p.op.startswith('v_dot2'):
                    if d.op==p.op:
                        toks=split_ops(d.text.split(None,1)[1])
                        ab=parse_regs(toks[1].split()[0])+parse_regs(toks[2].split()[0])
                        if r in ab: need(k,a,3,'dot->dot AB')
                    else: need(k,a,3,'dot->other')
                if r[0]=='s':
                    if d.kind=='vmem': need(k,a,5,'valu sgpr->vmem')
                    if d.kind=='valu': need(k,a,2,'valu sgpr->valu')
                if 'sdwa' in p.op and d.kind=='valu' and 'dst_sel:WORD' in p.text: need(k,a,1,'sdwa dst')
            elif p.kind=='salu':
                if r==('s','m0') and d.kind=='vmem' and getattr(d,'lds',False): need(k,a,1,'m0->dma')
        for r in set(d.w):
            a=lastw.get(r)
            if a is not None and ins[a].kind=='mfma' and d.kind in ('valu','ds','vmem'):
                n = 8 if ins[a].passes==4 else 12
                need(k,a,n,'mfma D->write WAW')
            if a is not None and ins[a].kind=='valu' and ins[a].op.startswith('v_dot2') and d.op!=ins[a].op and d.kind=='valu':
                need(k,a,3,'dot->other write')
            a=lastc.get(r)
            if a is not None and d.kind=='valu':
                need(k,a,3 if ins[a].passes==4 else 7,'mfma C read -> valu write WAR')
            a=laststore.get(r)
            if a is not None and d.kind=='valu': need(k,a,2,'store data WAR')
            elif a is not None: need(k,a,1,'store data WAR')
        for r in d.w: lastw[r]=k
        if d.kind=='mfma':
            for r in d.c: lastc[r]=k
        if getattr(d,'store',False) and len(d.data)>=3:
            for r in d.data: laststore[r]=k
    for e in errs[:maxrep]: print('HAZARD', e)
    if errs and fixmap is None: print(f'{name}: {len(errs)} hazards')
    return len(errs)
```

```python
from common import *
VX=0; VACC=144; VH=176; VW=192; VOUT=216; VB=248; VOGU=252; VOD=253; VT0=254; VT1=255
NW=6; DLOOK=5
SLOT=24576; NSLOT=6
SX=4; SG=8; SU=12; SD=16; SP=20
SRELG=24; SRELD=30; SM0=36; SW=37; SCNT=38; SONES=39; SC0=40; SC1=41; STMP=42; SMASK=43; SRT=44; SC=45; SDG=46; SDGW=47
def Xr(rb,ks): return VX+rb*72+ks*4
def ACC(fb,rb): return VACC+fb*8+rb*4
def Hr(rb,t): return VH+rb*8+t*4
def GP(rb,fb): return VH+rb*8+fb*2
def OUT(db,rb):
    return (f"a[{db*8+rb*4}:{db*8+rb*4+3}]") if db<32 else vr(VOUT+(db-32)*8+rb*4,4)
def WF(i): return VW+4*(i%NW)

def units_for_chunk(i):
    U=[]
    if i<6:
        ks0=6*(i%3); first=(i%3==0)
        order=[(k,fb) for half in (0,1) for k in range(6) for fb in (2*half,2*half+1)]
        if i==5: order=[(k,fb) for fb in range(4) for k in range(6)]
        if 1:
            if 1:
                for k,fb in order:
                    ks=ks0+k
                    mf=[(vr(ACC(fb,rb),4), vr(Xr(rb,ks),4), '0' if ks==0 else vr(ACC(fb,rb),4)) for rb in (0,1)]
                    U.append(dict(seg=fb,row0=32*k,mf=mf))
    else:
        ds=i-6
        for t in (0,1):
            for dl in range(12):
                db=12*ds+dl
                mf=[(OUT(db,rb), vr(Hr(rb,t),4), OUT(db,rb)) for rb in (0,1)]
                U.append(dict(seg=dl%4,row0=64*(dl//4)+32*t,mf=mf))
    return U

def emit_mlp(a, T, opt={}):
    A_=192*9216
    a(f"s_load_dwordx2 s[{SX}:{SX+1}], s[0:1], {KA_X}")
    a(f"s_load_dwordx2 s[{SG}:{SG+1}], s[0:1], {KA_WG}")
    a(f"s_load_dwordx2 s[{SU}:{SU+1}], s[0:1], {KA_WU}")
    a(f"s_load_dwordx2 s[{SD}:{SD+1}], s[0:1], {KA_WD}")
    a(f"s_load_dwordx2 s[{SP}:{SP+1}], s[0:1], {KA_WS}")
    a(f"v_lshrrev_b32 v{VT0}, 6, v0")
    a(f"v_and_b32 v{VT1}, 63, v0")
    a("s_nop 0")
    a(f"v_readfirstlane_b32 s{SW}, v{VT0}")
    l=VT1
    t0,t1,t2,t3=VACC,VACC+1,VACC+2,VACC+3
    a(f"v_lshrrev_b32 v{t0}, 2, v{l}")
    a(f"v_lshlrev_b32 v{t0}, 7, v{t0}")
    a(f"v_bfe_u32 v{t1}, v{l}, 3, 2")
    a(f"v_lshlrev_b32 v{t1}, 5, v{t1}")
    a(f"v_and_b32 v{t2}, 3, v{l}")
    a(f"v_lshlrev_b32 v{t2}, 3, v{t2}")
    a(f"v_add3_u32 v{VB}, v{t0}, v{t1}, v{t2}")
    for b in (1,2,3): a(f"v_xor_b32 v{VB+b}, {b<<5}, v{VB}")
    a(f"v_lshrrev_b32 v{t0}, 3, v{l}")
    a(f"v_bfe_u32 v{t1}, v{l}, 4, 2")
    a(f"v_lshlrev_b32 v{t1}, 1, v{t1}")
    a(f"v_and_b32 v{t2}, 7, v{l}")
    a(f"v_xor_b32 v{t1}, v{t1}, v{t2}")
    a(f"v_lshlrev_b32 v{t1}, 4, v{t1}")
    a(f"v_mul_u32_u24 v{VOD}, 1152, v{t0}")
    a(f"v_add_u32 v{VOD}, v{VOD}, v{t1}")
    a(f"v_lshrrev_b32 v{t2}, 2, v{t0}")
    a(f"v_lshlrev_b32 v{t2}, 3, v{t2}")
    a(f"v_and_b32 v{t3}, 3, v{t0}")
    a(f"v_add_u32 v{t2}, v{t2}, v{t3}")
    a(f"v_mul_u32_u24 v{VOGU}, 9216, v{t2}")
    a(f"v_add_u32 v{VOGU}, v{VOGU}, v{t1}")
    a(f"v_and_b32 v{t0}, 15, v{l}")
    a(f"v_mul_u32_u24 v{t0}, 1152, v{t0}")
    a(f"v_lshrrev_b32 v{t1}, 4, v{l}")
    a(f"v_lshlrev_b32 v{t1}, 4, v{t1}")
    a(f"v_add_u32 v{VT0}, v{t0}, v{t1}")
    a(f"s_mul_i32 s{SM0}, s{SW}, 6144")
    for n in range(6):
        a(f"s_mul_i32 s{STMP}, s{SW}, 48")
        a(f"s_add_u32 s{STMP}, s{STMP}, {8*n}")
        a(f"s_and_b32 s{SC0}, s{STMP}, 0xffffffe0")
        a(f"s_bfe_u32 s{SC1}, s{STMP}, 0x10003")
        a(f"s_lshl_b32 s{SC1}, s{SC1}, 4")
        a(f"s_add_u32 s{SC0}, s{SC0}, s{SC1}")
        a(f"s_bfe_u32 s{SC1}, s{STMP}, 0x10004")
        a(f"s_lshl_b32 s{SC1}, s{SC1}, 2")
        a(f"s_add_u32 s{SC0}, s{SC0}, s{SC1}")
        a(f"s_mul_i32 s{SC0}, s{SC0}, 9216")
        imm=1024*(n%4)
        a(f"s_sub_u32 s{SRELG+n}, s{SC0}, {imm}")
        a(f"s_lshr_b32 s{SC0}, s{STMP}, 6")
        a(f"s_lshl_b32 s{SC0}, s{SC0}, 7")
        a(f"s_and_b32 s{SC1}, s{STMP}, 63")
        a(f"s_mul_i32 s{SC1}, s{SC1}, 1152")
        a(f"s_add_u32 s{SC0}, s{SC0}, s{SC1}")
        a(f"s_add_u32 s{SRELD+n}, s{SC0}, {4096-imm}")
    a(f"s_mov_b32 s{SONES}, 0x3f803f80")
    a(f"s_mov_b32 s{SMASK}, 0xffff0000")
    a("s_waitcnt lgkmcnt(0)")
    for s,nb in ((SX,2048*1152),(SG,576*9216),(SU,576*9216),(SD,4608*1152+4096),(SP,0x10000000)):
        a(f"s_mov_b32 s{s+2}, {nb}")
        a(f"s_mov_b32 s{s+3}, 0x00020000")
    a(f"s_mul_i32 s{STMP}, s{SC}, {T*128}")
    for s in (SG,SU):
        a(f"s_add_u32 s{s}, s{s}, s{STMP}")
        a(f"s_addc_u32 s{s+1}, s{s+1}, 0")
    a(f"s_mul_i32 s{STMP}, s{SC}, {T*64*1152}")
    a(f"s_add_u32 s{SD}, s{SD}, s{STMP}")
    a(f"s_addc_u32 s{SD+1}, s{SD+1}, 0")
    add64(a,SD,-4096)
    a(f"s_mov_b32 s{SDG}, 0x{(128-2*A_)&0xffffffff:x}")
    a(f"s_mov_b32 s{SDGW}, 0x{(128-2*A_-T*128)&0xffffffff:x}")
    ST=opt.get('st', lambda a,i: None)
    ST(a,0)
    a(f"s_mul_i32 s{STMP}, s{SRT}, {128*1152}")
    a(f"s_mul_i32 s{SC0}, s{SW}, {32*1152}")
    a(f"s_add_u32 s{STMP}, s{STMP}, s{SC0}")
    if opt.get('xpat')=='contig': a(f"v_lshlrev_b32 v{VT1}, 4, v{VT1}")
    for rb in (0,1):
        if rb: a(f"s_add_u32 s{STMP}, s{STMP}, {16*1152}")
        for ks in range(18):
            if opt.get('xpat')=='contig':
                a(f"s_add_u32 s{SC1}, s{STMP}, {ks*1024}")
                a(f"buffer_load_dwordx4 {vr(Xr(rb,ks),4)}, v{VT1}, s[{SX}:{SX+3}], s{SC1} offen")
            elif opt.get('xpat')=='none': pass
            else:
                a(f"buffer_load_dwordx4 {vr(Xr(rb,ks),4)}, v{VT0}, s[{SX}:{SX+3}], s{STMP} offen offset:{ks*64}")
    if opt.get('split'):
        ST(a,1); a("s_waitcnt vmcnt(0)"); ST(a,2)
    def dma(j, slot, wrapsel=None):
        L=[]
        if j<3: s,rel,vo=SG,SRELG,VOGU
        elif j<6: s,rel,vo=SU,SRELG,VOGU
        else: s,rel,vo=SD,SRELD,VOD
        for n in range(6):
            g=[]
            if n==0: g.append(f"s_add_u32 m0, s{SM0}, {slot*SLOT}")
            if n==4: g.append(f"s_add_u32 m0, s{SM0}, {slot*SLOT+4096}")
            if n in (0,4): g.append("s_nop 0")
            g.append(f"buffer_load_dwordx4 v{vo}, s[{s}:{s+3}], s{rel+n} offen offset:{1024*(n%4)} lds")
            L.append(g)
        if j%3<2:
            d = A_ if j<6 else 384
            L.append([f"s_add_u32 s{s}, s{s}, {d}", f"s_addc_u32 s{s+1}, s{s+1}, 0"])
        elif j<6:
            if wrapsel is None:
                L.append([f"s_add_u32 s{s}, s{s}, s{SDG}", f"s_addc_u32 s{s+1}, s{s+1}, -1"])
            else:
                L.append([f"s_cmp_eq_u32 s{SCNT}, {wrapsel}", f"s_cselect_b32 s{STMP}, s{SDGW}, s{SDG}",
                          f"s_add_u32 s{s}, s{s}, s{STMP}", f"s_addc_u32 s{s+1}, s{s+1}, -1"])
        else:
            L.append([f"s_add_u32 s{s}, s{s}, {64*1152-768}", f"s_addc_u32 s{s+1}, s{s+1}, 0"])
        return L
    for q in range(4):
        for g in dma(q,q):
            for x in g: a(x)
    if opt.get('split'):
        ST(a,3); a("s_waitcnt vmcnt(0)"); ST(a,4)
    else: ST(a,1)
    for i in range(256): a(f"v_accvgpr_write_b32 a{i}, 0")
    for i in range(32): a(f"v_mov_b32 v{VOUT+i}, 0")
    if not opt.get('split'):
        ST(a,2)
        a("s_waitcnt vmcnt(42)") if opt.get('waitx') else None
        ST(a,3)
    Tm=[VACC+i for i in range(12)]
    RHO=[VW, VW+1]
    emit_ln(a, lambda ks: Xr(0,ks), 18, Tm, SONES, RHO[0], 18+24, rho_sq=True)
    if not opt.get('split'): ST(a,4)
    emit_ln(a, lambda ks: Xr(1,ks), 18, Tm, SONES, RHO[1], 24, rho_sq=True)
    ST(a,5)
    skip=a.newlabel('L_mlp_norho')
    a(f"s_cmp_lg_u32 s{SC}, 0")
    a(f"s_cbranch_scc1 {skip}")
    a(f"v_mbcnt_lo_u32_b32 v{VACC}, -1, 0")
    a(f"v_mbcnt_hi_u32_b32 v{VACC}, -1, v{VACC}")
    a(f"v_lshlrev_b32 v{VACC}, 2, v{VACC}")
    a(f"s_lshl_b32 s{STMP}, s{SRT}, 9")
    a(f"s_lshl_b32 s{SC0}, s{SW}, 7")
    a(f"s_add_u32 s{STMP}, s{STMP}, s{SC0}")
    a(f"s_add_u32 s{STMP}, s{STMP}, {WS_RHO2}")
    a("s_mov_b64 exec, 0xffff")
    a(f"buffer_store_dword v{RHO[0]}, v{VACC}, s[{SP}:{SP+3}], s{STMP} offen")
    a(f"buffer_store_dword v{RHO[1]}, v{VACC}, s[{SP}:{SP+3}], s{STMP} offen offset:64")
    a("s_mov_b64 exec, -1")
    a("s_waitcnt vmcnt(0)")
    a.label(skip)
    disp=[0,0,0,0]
    allU=[]
    for st in (0,1):
        for i in range(9):
            q=9*st+i
            for u in units_for_chunk(i):
                u=dict(u); u['slot']=q%NSLOT; u['q']=q; allU.append(u)
    NU=len(allU)
    def read_instr(k, j):
        u=allU[k%NU]
        addr=u['slot']*SLOT+(u['row0']+16*j)*128
        b=u['seg']; off=addr-u['disp']
        assert 0<=off<65536,(k,off)
        return f"ds_read_b64_tr_b16 {vr(WF(k)+2*j,2)}, v{VB+b} offset:{off}"
    for u in allU: u['disp']=49152*(u['slot']//2)
    bump={}
    for b in range(4):
        idx=[k for k,u in enumerate(allU) if u['seg']==b]
        for p in range(len(idx)):
            k0=idx[p]; k1=idx[(p+1)%len(idx)]
            d=allU[k1]['disp']-allU[k0]['disp']
            if d: bump.setdefault(k0,[]).append(f"v_add_u32 v{VB+b}, 0x{d&0xffffffff:x}, v{VB+b}")
    a("s_waitcnt vmcnt(18)")
    a("s_barrier")
    for k in range(DLOOK):
        a(read_instr(k,0)); a(read_instr(k,1))
        assert k not in bump
    a(f"s_mov_b32 s{SCNT}, 0")
    if opt.get('dmavcc'):
        a(f"s_and_b32 s{STMP}, s{SW}, {opt['dmavcc']}\ns_mov_b32 vcc_lo, s{STMP}\ns_mov_b32 vcc_hi, 0")
    WPER=opt.get('wper',2)
    cap={}
    for k in range(NU):
        for j in (0,1): cap[(k,j)]=1
        if (k+1)%WPER==0: cap[(k,1)]=0
        if k%24==24-DLOOK-1: cap[(k,1)]=0; cap[(k,0)]=0
        if k%216==215: cap[(k,1)]=0; cap[(k,0)]=0
    ex={kj:[] for kj in cap}
    for k,L in bump.items():
        u=(k-DLOOK)%NU
        for x in L: ex[(u,1)].append(x); cap[(u,1)]-=1
    def chain(start, instrs, deadline):
        slots=[(k,j) for k in range(start,deadline) for j in (0,1)]
        free=[s_ for s_ in slots if cap[(s_[0]%NU,s_[1])]>0]
        n=len(instrs)
        if len(free)>=n:
            use=free[:n]
        else:
            extra=n-len(free)
            use=list(free)
            step=len(slots)/extra
            use+= [slots[int(i*step)] for i in range(extra)]
            use.sort()
            over[0]+=extra
        for x,(k,j) in zip(instrs,use):
            ex[(k%NU,j)].append(x); cap[(k%NU,j)]-=1
    over=[0]
    def flat(G): return [x for g in G for x in g if x!='s_nop 0']
    for st in (0,1):
        base=st*216
        def cv(fb,rb): return [f"v_cvt_pk_bf16_f32 v{GP(rb,fb)}, v{ACC(fb,rb)}, v{ACC(fb,rb)+1}", f"v_cvt_pk_bf16_f32 v{GP(rb,fb)+1}, v{ACC(fb,rb)+2}, v{ACC(fb,rb)+3}"]
        def hm(fb,rb):
            A=ACC(fb,rb); G_=GP(rb,fb); L=[]
            for hh in (0,1):
                L+=[f"v_lshlrev_b32 v{VT0}, 16, v{G_+hh}", f"v_and_b32 v{VT1}, s{SMASK}, v{G_+hh}",
                    f"v_pk_mul_f32 {vr(A+2*hh,2)}, {vr(A+2*hh,2)}, {vr(VT0,2)}", f"v_cvt_pk_bf16_f32 v{G_+hh}, v{A+2*hh}, v{A+2*hh+1}"]
            return L
        if opt.get('valu',1):
            chain(base+24*2+13, cv(0,0)+cv(0,1)+cv(1,0)+cv(1,1), base+24*3)
            chain(base+24*3+2, cv(2,0)+cv(2,1)+cv(3,0)+cv(3,1), base+24*3+12)
    for st in (0,1):
        base=st*216
        if opt.get('valu',1):
            chain(base+24*5+8, hm(0,0)+hm(0,1), base+24*5+15)
            chain(base+24*5+15, hm(1,0)+hm(1,1), base+24*5+23)
            chain(base+24*5+23, hm(2,0)+hm(2,1), base+24*6+5)
            chain(base+24*6+5, hm(3,0)+hm(3,1), base+24*6+11)
        if opt.get('dma',1):
            for i in range(9):
                q=9*st+i; cb=base+24*i
                j=(i+4)%9; slot=(q+4)%NSLOT
                ws=None
                if j==2: ws=T-2
                if j==5: ws=T-1
                G=flat(dma(j,slot,ws))
                if opt.get('dmahalf'): G=[x for n,x in enumerate(G) if not (x.startswith('buffer_load') and n%2==0)]
                if opt.get('dmaonly'): G=[x for x in G if x.startswith('buffer_load')]
                if opt.get('dmanold'): G=[x for x in G if not x.startswith('buffer_load')]
                if opt.get('dmavcc'):
                    G2=[]
                    for x in G:
                        if x.startswith('buffer_load'):
                            l1=a.newlabel('Ls'); l2=a.newlabel('Ls')
                            G2+=[f"s_cbranch_vccnz {l1}\n{x}\n{l1}:", f"s_cbranch_vccz {l2}\n{x}\n{l2}:"]
                        else: G2.append(x)
                    G=G2
                chain(cb-DLOOK+1 if i>0 or st>0 else cb, G, cb+24-DLOOK)
    if opt.get('verbose'): print('overfilled',over[0])
    lp=a.newlabel('L_mlp_loop'); done=a.newlabel('L_mlp_done')
    if opt.get('stamp'): a(opt['stamp'][0])
    a.raw(".p2align 6"); a.label(lp)
    for k,u in enumerate(allU):
        if k==216:
            a(f"s_add_u32 s{SCNT}, s{SCNT}, 1")
            a(f"s_cmp_eq_u32 s{SCNT}, {T}")
            a(f"s_cbranch_scc1 {done}")
        if k%24==24-DLOOK:
            if opt.get('dma',1) and not opt.get('novm'): a("s_waitcnt vmcnt(18)")
            if opt.get('barrier',1): a("s_barrier")
        if k%WPER==0: a(f"s_waitcnt lgkmcnt({2*(DLOOK-WPER)})")
        kr=k+DLOOK
        M=[f"v_mfma_f32_16x16x32_bf16 {u['mf'][j][0]}, {vr(WF(k),4)}, {u['mf'][j][1]}, {u['mf'][j][2]}" for j in (0,1)]
        R=[read_instr(kr,j) for j in (0,1)] if opt.get('reads',1) else ['','']
        hasdma=any('buffer_load' in x for j in (0,1) for x in ex[(k,j)])
        mode=opt.get('order','std')
        E0,E1=ex[(k,0)],ex[(k,1)]
        if mode=='std' or (mode in('mmd','mdm') and not hasdma):
            seq=[M[0],R[0]]+E0+[M[1],R[1]]+E1
        elif mode=='mm':
            seq=[M[0],M[1],R[0],R[1]]+E0+E1
        elif mode=='mmd':
            dm=[x for x in E0+E1 if 'buffer_load' in x]; ot=[x for x in E0+E1 if 'buffer_load' not in x]
            seq=[M[0],M[1]]+dm+[R[0],R[1]]+ot
            pre=[x for x in ot if x.startswith('s_add_u32 m0')]
            if pre and (E0+E1).index(pre[0])<(E0+E1).index(dm[0]):
                ot2=[x for x in ot if x not in pre]
                seq=pre+[M[0],M[1]]+dm+[R[0],R[1]]+ot2
        elif mode=='mdm':
            dm=[x for x in E0+E1 if 'buffer_load' in x]; ot=[x for x in E0+E1 if 'buffer_load' not in x]
            pre=[x for x in ot if x.startswith('s_add_u32 m0')]
            if pre and (E0+E1).index(pre[0])<(E0+E1).index(dm[0]):
                ot2=[x for x in ot if x not in pre]
                seq=pre+[M[0]]+dm+[M[1],R[0],R[1]]+ot2
            else: seq=[M[0]]+dm+[M[1],R[0],R[1]]+ot
        for x in seq:
            if x: a(x)
    a(f"s_add_u32 s{SCNT}, s{SCNT}, 1")
    a(f"s_cmp_lg_u32 s{SCNT}, {T}")
    a(f"s_cbranch_scc1 {lp}")
    a.label(done)
    if opt.get('stamp'): a(opt['stamp'][1])
    a("s_waitcnt vmcnt(0) lgkmcnt(0)")
    a(f"s_mul_i32 s{STMP}, s{SC}, {PART_SZ}")
    a(f"s_lshl_b32 s{SC0}, s{SRT}, 2")
    a(f"s_add_u32 s{SC0}, s{SC0}, s{SW}")
    a(f"s_mul_i32 s{SC0}, s{SC0}, {2*18*1024}")
    a(f"s_add_u32 s{STMP}, s{STMP}, s{SC0}")
    a(f"s_add_u32 s{STMP}, s{STMP}, {WS_PART}")
    a(f"v_mbcnt_lo_u32_b32 v{VT0}, -1, 0")
    a(f"v_mbcnt_hi_u32_b32 v{VT0}, -1, v{VT0}")
    a(f"v_lshlrev_b32 v{VT0}, 4, v{VT0}")
    tmp=[VACC+i for i in range(32)]
    n=0
    for rb in (0,1):
        for dbp in range(18):
            P=VX+4*(n%16); n+=1
            src=[]
            for h in (0,1):
                db=2*dbp+h
                if db<32:
                    tt=tmp[8*(n%4)+4*h: 8*(n%4)+4*h+4]
                    for i in range(4): a(f"v_accvgpr_read_b32 v{tt[i]}, a{db*8+rb*4+i}")
                    src+=tt
                else:
                    src+=[VOUT+(db-32)*8+rb*4+i for i in range(4)]
            for i in range(4): a(f"v_cvt_pk_bf16_f32 v{P+i}, v{src[2*i]}, v{src[2*i+1]}")
            off=(rb*18+dbp)*1024
            so=STMP
            if off>=4096 and off%4096==0:
                a(f"s_add_u32 s{STMP}, s{STMP}, 4096")
            a(f"buffer_store_dwordx4 {vr(P,4)}, v{VT0}, s[{SP}:{SP+3}], s{STMP} offen offset:{off%4096}")
    a("s_waitcnt vmcnt(0)")
```

```python
from common import *
import math
VX=0; WFB=144; NW=6; DLOOK=5
VB=168
VW=174
VXE=178; VXO=179; VR0=180; VR1=181; VL=182
VT=184
RHO=232
VRV=236
SX=4; SWQ=8; SWS=12
SRT=44; SHG=45; SW=37; SONES=39; STMP=42; SC0=40; SC1=41; SM0=36; SKO=46
SLOT=16384; NSLOT=9; XST=5*SLOT
def Xr(rb,ks): return VX+rb*72+ks*4
def WF(i): return WFB+4*(i%NW)
def ACC(b,rb): return b*8+rb*4
C0=[0,5,9,14]
NB=14
def unit_read(ks,b,j):
    s=ks%NSLOT; grp=s//4
    off=(s%4)*SLOT+j*7680
    if b<4: base=VB+grp; off+=8*C0[b]
    elif b<8: base=VB+grp; off+=160+8*C0[b-4]
    elif b==8: base=VB+3+grp
    else: base=VB+grp; off+=320+32*(b-9)
    return base,off
def emit_qkv(a, sync_tail=True):
    a(f"s_load_dwordx2 s[{SX}:{SX+1}], s[0:1], {KA_X}")
    a(f"s_load_dwordx2 s[{SWQ}:{SWQ+1}], s[0:1], {KA_WQKV}")
    a(f"s_load_dwordx2 s[{SWS}:{SWS+1}], s[0:1], {KA_WS}")
    t0,t1,t2,t3,t4=VT,VT+1,VT+2,VT+3,VT+4
    l=VL
    a(f"v_lshrrev_b32 v{t0}, 6, v0")
    a(f"v_and_b32 v{l}, 63, v0")
    a("s_nop 0")
    a(f"v_readfirstlane_b32 s{SW}, v{t0}")
    a(f"v_lshrrev_b32 v{t0}, 3, v{l}")
    a(f"v_lshrrev_b32 v{t1}, 4, v{l}")
    a(f"v_and_b32 v{t2}, 7, v{l}")
    a(f"v_xor_b32 v{t1}, v{t1}, v{t2}")
    a(f"v_lshlrev_b32 v{t1}, 4, v{t1}")
    a(f"v_mul_u32_u24 v{t0}, 1152, v{t0}")
    a(f"v_add_u32 v{VXE}, v{t0}, v{t1}")
    a(f"v_xor_b32 v{t1}, 64, v{t1}")
    a(f"v_add_u32 v{VXO}, v{t0}, v{t1}")
    a(f"v_add_u32 v{VXO}, {8*1152}, v{VXO}")
    a(f"v_and_b32 v{t0}, 15, v{l}")
    a(f"v_lshrrev_b32 v{t1}, 1, v{t0}")
    a(f"v_lshrrev_b32 v{t2}, 4, v{l}")
    a(f"v_xor_b32 v{t1}, v{t1}, v{t2}")
    a(f"v_lshlrev_b32 v{t1}, 4, v{t1}")
    a(f"v_lshlrev_b32 v{t0}, 7, v{t0}")
    a(f"v_add_u32 v{VR0}, v{t0}, v{t1}")
    a(f"s_mul_i32 s{SM0}, s{SW}, 18432")
    a(f"s_add_u32 s{SM0}, s{SM0}, {XST}")
    a(f"v_add_u32 v{VR0}, s{SM0}, v{VR0}")
    a(f"v_xor_b32 v{VR1}, 64, v{VR0}")
    a(f"s_lshl_b32 s{STMP}, s{SW}, 6")
    for i in range(4):
        a(f"v_add_u32 v{t0}, s{STMP}, v{l}")
        if i: a(f"v_add_u32 v{t0}, {256*i}, v{t0}")
        a(f"v_mul_u32_u24 v{t1}, 2185, v{t0}")
        a(f"v_lshrrev_b32 v{t1}, 16, v{t1}")
        a(f"v_mul_u32_u24 v{t2}, 30, v{t1}")
        a(f"v_sub_u32 v{t2}, v{t0}, v{t2}")
        a(f"v_mul_u32_u24 v{t3}, 26, v{t2}")
        a(f"v_lshrrev_b32 v{t3}, 8, v{t3}")
        a(f"v_mul_u32_u24 v{t4}, 10, v{t3}")
        a(f"v_sub_u32 v{t2}, v{t2}, v{t4}")
        a(f"v_min_u32 v{t2}, 8, v{t2}")
        a(f"v_lshlrev_b32 v{t2}, 4, v{t2}")
        a(f"v_mul_u32_u24 v{t3}, 1152, v{t3}")
        a(f"v_add_u32 v{t2}, v{t2}, v{t3}")
        a(f"v_bfe_u32 v{t3}, v{t1}, 2, 2")
        a(f"v_lshlrev_b32 v{t3}, 3, v{t3}")
        a(f"v_lshrrev_b32 v{t4}, 4, v{t1}")
        a(f"v_lshlrev_b32 v{t4}, 2, v{t4}")
        a(f"v_add_u32 v{t3}, v{t3}, v{t4}")
        a(f"v_and_b32 v{t4}, 3, v{t1}")
        a(f"v_add_u32 v{t3}, v{t3}, v{t4}")
        a(f"v_mul_u32_u24 v{t3}, 3456, v{t3}")
        a(f"v_add_u32 v{VW+i}, v{t2}, v{t3}")
    a(f"v_lshrrev_b32 v{t0}, 2, v{l}")
    a(f"v_mul_u32_u24 v{t0}, 480, v{t0}")
    a(f"v_and_b32 v{t1}, 3, v{l}")
    a(f"v_lshlrev_b32 v{t2}, 3, v{t1}")
    a(f"v_add_u32 v{VB}, v{t0}, v{t2}")
    a(f"v_lshrrev_b32 v{t2}, 1, v{t1}")
    a(f"v_mul_u32_u24 v{t2}, 160, v{t2}")
    a(f"v_and_b32 v{t1}, 1, v{t1}")
    a(f"v_mul_u32_u24 v{t1}, 72, v{t1}")
    a(f"v_add3_u32 v{VB+3}, v{t0}, v{t1}, v{t2}")
    a(f"v_add_u32 v{VB+3}, 32, v{VB+3}")
    for g in (1,2):
        a(f"v_add_u32 v{VB+g}, {g*4*SLOT}, v{VB}")
        a(f"v_add_u32 v{VB+3+g}, {g*4*SLOT}, v{VB+3}")
    a(f"s_mov_b32 s{SONES}, 0x3f803f80")
    a("s_waitcnt lgkmcnt(0)")
    for s,nb in ((SX,2048*1152),(SWQ,576*3456),(SWS,0x10000000)):
        a(f"s_mov_b32 s{s+2}, {nb}")
        a(f"s_mov_b32 s{s+3}, 0x00020000")
    a(f"s_mul_i32 s{STMP}, s{SRT}, {128*1152}")
    a(f"s_mul_i32 s{SC0}, s{SW}, {32*1152}")
    a(f"s_add_u32 s{STMP}, s{STMP}, s{SC0}")
    def xdma(rb):
        a(f"s_add_u32 s{SC0}, s{STMP}, {rb*16*1152}")
        for n in range(18):
            a(f"s_add_u32 m0, s{SM0}, {n*1024}")
            if n and n%2==0: a(f"s_add_u32 s{SC0}, s{SC0}, 128")
            else: a("s_nop 0")
            a(f"buffer_load_dwordx4 v{VXO if n%2 else VXE}, s[{SX}:{SX+3}], s{SC0} offen lds")
    def xread(rb):
        for ks in range(18):
            a(f"ds_read_b128 {vr(Xr(rb,ks),4)}, v{VR1 if ks%2 else VR0} offset:{(ks//2)*2048}")
    a(f"s_mul_i32 s{SKO}, s{SHG}, 144")
    a(f"s_lshl_b32 s{SC1}, s{SW}, 10")
    SWM=47
    a(f"s_mov_b32 s{SWM}, s{SC1}")
    def wdma(ks):
        L=[]
        for i in range(4):
            L.append([f"s_add_u32 m0, s{SWM}, {(ks%NSLOT)*SLOT+i*4096}", "s_nop 0",
                      f"buffer_load_dwordx4 v{VW+i}, s[{SWQ}:{SWQ+3}], s{SKO} offen lds"])
        L.append([f"s_add_u32 s{SKO}, s{SKO}, {32*3456}"])
        return L
    xdma(0)
    for ks in range(5):
        for g in wdma(ks):
            for x in g: a(x)
    a("s_waitcnt vmcnt(20)")
    xread(0)
    a("s_waitcnt lgkmcnt(0)")
    xdma(1)
    Tm=[VT+i for i in range(12)]
    emit_ln(a, lambda ks: Xr(0,ks), 18, Tm, SONES, RHO, 0, waits=False)
    a("s_waitcnt vmcnt(0)")
    xread(1)
    a("s_waitcnt lgkmcnt(0)")
    a("s_barrier")
    for ks in range(5,9):
        for g in wdma(ks):
            for x in g: a(x)
    emit_ln(a, lambda ks: Xr(1,ks), 18, Tm, SONES, RHO+1, 0, waits=False)
    U=[(ks,b) for ks in range(18) for b in range(NB)]
    NU=len(U)
    def rd(k,j):
        ks,b=U[k]; base,off=unit_read(ks,b,j)
        assert off<65536
        return f"ds_read_b64_tr_b16 {vr(WF(k)+2*j,2)}, v{base} offset:{off}"
    issued=list(range(5,9))
    def wait_for(tile):
        n=4*len([t for t in issued if t>tile])
        return n
    for k in range(DLOOK):
        a(rd(k,0)); a(rd(k,1))
    pend=[]
    for k,(ks,b) in enumerate(U):
        if b==NB-DLOOK and ks+1<18:
            nt=ks+1
            if nt>=5: a(f"s_waitcnt vmcnt({wait_for(nt)})")
            a("s_barrier")
            t=ks+8
            if 1<=ks and t<18:
                pend=[g for g in wdma(t)]; issued.append(t)
        if k%2==0:
            rem=min(DLOOK,NU-k)
            a(f"s_waitcnt lgkmcnt({max(0,2*(rem-2))})")
        ks_,b_=ks,b
        for rb in (0,1):
            D=ar(ACC(b,rb),4); C='0' if ks==0 else D
            if b<9: a(f"v_mfma_f32_16x16x32_bf16 {D}, {vr(WF(k),4)}, {vr(Xr(rb,ks),4)}, {C}")
            else:   a(f"v_mfma_f32_16x16x32_bf16 {D}, {vr(Xr(rb,ks),4)}, {vr(WF(k),4)}, {C}")
            if k+DLOOK<NU: a(rd(k+DLOOK,rb))
            if rb==1 and pend:
                for x in pend.pop(0): a(x)
    assert not pend
    qs=18**-0.5*math.log2(math.e)
    n_,g_=VT,VT+1
    a(f"v_and_b32 v{n_}, 15, v{l}")
    a(f"v_lshrrev_b32 v{g_}, 4, v{l}")
    for rb in (0,1):
        for i in range(4):
            a(f"v_lshlrev_b32 v{VT+2}, 4, v{g_}")
            if i: a(f"v_add_u32 v{VT+2}, {4*i}, v{VT+2}")
            a(f"ds_bpermute_b32 v{VRV+4*rb+i}, v{VT+2}, v{RHO+rb}")
    RQ=VT+4; RTL=VT+6
    for rb in (0,1):
        a(f"v_mul_f32 v{RQ+rb}, {fbits(qs)}, v{RHO+rb}")
    a(f"v_cmp_gt_u32 vcc, 2, v{g_}")
    for rb in (0,1):
        a(f"v_cndmask_b32 v{RTL+rb}, v{RHO+rb}, v{RQ+rb}, vcc")
    VQM=VT+8; VTL=VT+9; VV=VT+10
    a(f"v_lshrrev_b32 v{VT+2}, 1, v{g_}")
    a(f"v_lshlrev_b32 v{VT+2}, 9, v{VT+2}")
    a(f"v_lshlrev_b32 v{VT+3}, 4, v{n_}")
    a(f"v_add_u32 v{VQM}, v{VT+2}, v{VT+3}")
    a(f"v_and_b32 v{VT+2}, 1, v{g_}")
    a(f"v_lshlrev_b32 v{VT+3}, 3, v{VT+2}")
    a(f"v_add_u32 v{VQM}, v{VQM}, v{VT+3}")
    a(f"v_lshlrev_b32 v{VTL}, 15, v{VT+2}")
    a(f"v_lshrrev_b32 v{VT+3}, 1, v{g_}")
    a(f"v_lshlrev_b32 v{VT+3}, 19, v{VT+3}")
    a(f"v_add_u32 v{VTL}, v{VTL}, v{VT+3}")
    a(f"v_lshlrev_b32 v{VT+3}, 3, v{n_}")
    a(f"v_add_u32 v{VTL}, v{VTL}, v{VT+3}")
    gp=VT+16
    a(f"v_mul_u32_u24 v{gp}, 304, v{VT+2}")
    a(f"v_lshrrev_b32 v{VT+3}, 1, v{g_}")
    a(f"v_lshlrev_b32 v{VT+3}, 3, v{VT+3}")
    a(f"v_add_u32 v{gp}, v{gp}, v{VT+3}")
    for j in range(5):
        a(f"v_add_u32 v{VT+2}, {16*j}, v{n_}")
        if j<4:
            a(f"v_mul_u32_u24 v{VT+3}, 57, v{VT+2}")
            a(f"v_lshrrev_b32 v{VT+3}, 10, v{VT+3}")
            a(f"v_mul_u32_u24 v{VT+17}, 18, v{VT+3}")
            a(f"v_sub_u32 v{VT+2}, v{VT+2}, v{VT+17}")
        else:
            a(f"v_subrev_u32 v{VT+3}, 8, v{n_}")
            a(f"v_cmp_gt_u32 vcc, 8, v{n_}")
            a(f"v_cndmask_b32 v{VT+3}, v{VT+3}, 3, vcc") if False else None
            a(f"v_mov_b32 v{VT+17}, 3")
            a(f"v_cndmask_b32 v{VT+3}, v{VT+3}, v{VT+17}, vcc")
            a(f"v_add_u32 v{VT+2}, 10, v{n_}")
            a(f"v_mov_b32 v{VT+17}, 18")
            a(f"v_cndmask_b32 v{VT+2}, v{VT+17}, v{VT+2}, vcc")
        a(f"v_mul_u32_u24 v{VT+3}, {VT_HEAD}, v{VT+3}")
        a(f"v_lshlrev_b32 v{VT+2}, 4, v{VT+2}")
        a(f"v_add3_u32 v{VV+j}, v{VT+2}, v{VT+3}, v{gp}")
    a(f"v_mov_b32 v{VT+17}, 0x80000000")
    a(f"v_cmp_gt_u32 vcc, 12, v{n_}")
    a(f"v_cndmask_b32 v{VV+4}, v{VT+17}, v{VV+4}, vcc")
    SQ=48; SK=49; ST_=50; SV=51
    a(f"s_lshl_b32 s{SC0}, s{SRT}, 2")
    a(f"s_add_u32 s{SC0}, s{SC0}, s{SW}")
    a(f"s_lshl_b32 s{SQ}, s{SC0}, 10")
    a(f"s_lshl_b32 s{SC1}, s{SHG}, 18")
    a(f"s_add_u32 s{SQ}, s{SQ}, s{SC1}")
    a(f"s_add_u32 s{SK}, s{SQ}, {WS_KM}")
    if WS_QM: a(f"s_add_u32 s{SQ}, s{SQ}, {WS_QM}")
    a(f"s_lshl_b32 s{ST_}, s{SC0}, 8")
    a(f"s_lshl_b32 s{SC1}, s{SHG}, 16")
    a(f"s_add_u32 s{ST_}, s{ST_}, s{SC1}")
    a(f"s_add_u32 s{ST_}, s{ST_}, {WS_QT}")
    a(f"s_mul_i32 s{SV}, s{SC0}, {2*608}")
    a(f"s_mul_i32 s{SC1}, s{SHG}, {4*VT_HEAD}")
    a(f"s_add_u32 s{SV}, s{SV}, s{SC1}")
    a(f"s_add_u32 s{SV}, s{SV}, {WS_VT}")
    a("s_waitcnt lgkmcnt(0)")
    TP=VT+20
    cnt=[0]
    def fetch(b,rb,scale):
        t=TP+8*(cnt[0]%3); cnt[0]+=1
        for i in range(4): a(f"v_accvgpr_read_b32 v{t+i}, a{ACC(b,rb)+i}")
        for i in range(4):
            sc = scale if isinstance(scale,int) else scale[i]
            a(f"v_mul_f32 v{t+i}, v{sc}, v{t+i}")
        return t
    SH=52
    sc1=""
    for t_,(b0,sb,scl) in enumerate(((0,SQ,RQ),(4,SK,RHO))):
        for hh in range(4):
            a(f"s_add_u32 s{SH}, s{sb}, {hh*65536}")
            for rb in (0,1):
                t=fetch(b0+hh,rb,scl+rb)
                a(f"v_cvt_pk_bf16_f32 v{t+4}, v{t}, v{t+1}")
                a(f"v_cvt_pk_bf16_f32 v{t+5}, v{t+2}, v{t+3}")
                a(f"buffer_store_dwordx2 {vr(t+4,2)}, v{VQM}, s[{SWS}:{SWS+3}], s{SH} offen offset:{rb*256}")
    for rb in (0,1):
        t=fetch(8,rb,RTL+rb)
        a(f"v_cvt_pk_bf16_f32 v{t+4}, v{t}, v{t+1}")
        a(f"v_mov_b32 v{t+5}, s{SONES}")
        a(f"v_cvt_pk_bf16_f32 v{t+6}, v{t+2}, v{t+3}")
        a(f"v_mov_b32 v{t+7}, s{SONES}")
        a(f"buffer_store_dwordx2 {vr(t+4,2)}, v{VTL}, s[{SWS}:{SWS+3}], s{ST_} offen offset:{rb*128}")
        a(f"s_add_u32 s{SH}, s{ST_}, 16384")
        a(f"buffer_store_dwordx2 {vr(t+6,2)}, v{VTL}, s[{SWS}:{SWS+3}], s{SH} offen offset:{rb*128}")
    for j in range(5):
        for rb in (0,1):
            t=fetch(9+j,rb,[VRV+4*rb+i for i in range(4)])
            a(f"v_cvt_pk_bf16_f32 v{t+4}, v{t}, v{t+1}")
            a(f"v_cvt_pk_bf16_f32 v{t+5}, v{t+2}, v{t+3}")
            if j==4:
                a(f"v_cmp_gt_u32 vcc, 8, v{n_}")
                a(f"v_mov_b32 v{t+6}, s{SONES}")
                a(f"v_cndmask_b32 v{t+4}, v{t+6}, v{t+4}, vcc")
                a(f"v_cndmask_b32 v{t+5}, v{t+6}, v{t+5}, vcc")
            a(f"buffer_store_dwordx2 {vr(t+4,2)}, v{VV+j}, s[{SWS}:{SWS+3}], s{SV} offen offset:{rb*608}")
    a("s_waitcnt vmcnt(0)")
```

```python
import sys; sys.path.insert(0,'work'); sys.path.insert(0,'gen')
from common import *
import qkv, att, mlp, fin, hazard
NAME='recurrent_scan__softmax_full_mha__glu_gated_bilinear__prompt'
def k_qkv():
    a=A()
    a("s_cmp_ge_u32 s2, 128\ns_cbranch_scc1 L_qkv_exit")
    a(f"s_and_b32 s50, s2, 7\ns_lshl_b32 s50, s50, 1\ns_bfe_u32 s51, s2, 0x10003\ns_add_u32 s{qkv.SRT}, s50, s51\ns_lshr_b32 s{qkv.SHG}, s2, 4")
    qkv.emit_qkv(a)
    a.label("L_qkv_exit"); a("s_endpgm")
    hazard.fix(a,'qkv'); return a
def k_mid():
    a=A(); a.uid=1000
    a("s_cmp_ge_u32 s2, 256\ns_cbranch_scc1 L_mid_exit")
    a("s_cmp_ge_u32 s2, 128\ns_cbranch_scc1 L_mid_mlp")
    a(f"s_and_b32 s50, s2, 7\ns_lshl_b32 s50, s50, 2\ns_bfe_u32 s51, s2, 0x20003\ns_add_u32 s{att.SH}, s50, s51\ns_lshr_b32 s{att.SQG}, s2, 5")
    att.emit_att(a,{})
    a("s_endpgm")
    a.label("L_mid_mlp")
    a(f"s_and_b32 s{mlp.SC}, s2, 7\ns_lshr_b32 s51, s2, 3\ns_and_b32 s{mlp.SRT}, s51, 15")
    mlp.emit_mlp(a,9,{})
    a.label("L_mid_exit"); a("s_endpgm")
    hazard.fix(a,'mid'); return a
def k_fin():
    a=A(); a.uid=2000
    a("s_cmp_ge_u32 s2, 192\ns_cbranch_scc1 L_fin_exit")
    a(f"s_and_b32 s50, s2, 7\ns_lshl_b32 s50, s50, 2\ns_bfe_u32 s51, s2, 0x20003\ns_add_u32 s{fin.SRT}, s50, s51\ns_lshr_b32 s{fin.SCG}, s2, 5")
    fin.emit_fin(a,{})
    a.label("L_fin_exit"); a("s_endpgm")
    hazard.fix(a,'fin'); return a
def build():
    ref=open(f'cdna_kernels/{NAME}.s.ref').read().split('\n')
    hdr=[l for l in ref if l.startswith(';') and '@launch' not in l and not l.startswith('; Override') and not l.startswith('; grid=')]
    hdr=[l for l in ref[:ref.index([x for x in ref if x.startswith('; Override')][0])]]
    K=[('qkv_kernel',k_qkv(),128,163840,512,256),(NAME+'_kernel',k_mid(),256,163840,512,256),('fin_kernel',k_fin(),192,110592,320,256)]
    t='\n'.join(hdr)+'\n'
    for n,a,g,lds,vg,ac in K: t+=f"; @launch kernel={n} grid=({g},1,1) block=(256,1,1) lds={lds}\n"
    t+='.amdgcn_target "amdgcn-amd-amdhsa--gfx950"\n.text\n'
    for n,a,g,lds,vg,ac in K: t+=kernel_head(n)+a.text()
    t+='.section .rodata,"a"\n'
    for n,a,g,lds,vg,ac in K: t+=kernel_desc(n,vg,96,ac,80)
    return t
if __name__=='__main__':
    t=build()
    out=sys.argv[1] if len(sys.argv)>1 else f'cdna_kernels/{NAME}.s'
    open(out,'w').write(t); print(len(t),'bytes')
```
